```python
import torch

def _softmax(x, axis=-1):
    return torch.softmax(x, dim=axis)
def _gelu(x):
    return torch.nn.functional.gelu(x, approximate="tanh")
def _silu(x):
    return torch.nn.functional.silu(x)
def _sigmoid(x):
    return torch.sigmoid(x)
def _layernorm(x, axis=-1, eps=1e-5):
    m = x.mean(dim=axis, keepdim=True)
    v = x.var(dim=axis, keepdim=True, unbiased=False)
    return (x - m) / torch.sqrt(v + eps)
def _scatter_add(tgt, idx, src, axis=0):
    return tgt.clone().index_add_(axis, idx, src)
def _segment_sum(src, seg, n):
    out = torch.zeros((n,) + src.shape[1:], dtype=src.dtype)
    return out.index_add_(0, seg, src)
def _pad(x, pw):
    flat = tuple(v for pair in reversed(pw) for v in pair)
    return torch.nn.functional.pad(x, flat)

kernel_name = 'sequential_preLN__softmax_full_mha__dense_activation_relu__prompt'

def setup_inputs():

    _w = (lambda a: (lambda t: t.to(torch.bfloat16) if t.is_floating_point() else t)(torch.as_tensor(a)))
    def _A_setup():
        B, S, D = 1, 2048, 448
        return {
            "x": _w((lambda *s: torch.randn(*s, dtype=torch.bfloat16) * 0.05)(B, S, D)),
            "wqkv": _w((lambda *s: torch.randn(*s, dtype=torch.bfloat16) * 0.05)(D, 3 * D)),
            "wo": _w((lambda *s: torch.randn(*s, dtype=torch.bfloat16) * 0.05)(D, D)),
        }
    _A_in = _A_setup()

    def _B_setup():
        B, S, D, Dff = 1, 2048, 448, 1792
        return {
            "x": _w((lambda *s: torch.randn(*s, dtype=torch.bfloat16) * 0.05)(B, S, D)),
            "w1": _w((lambda *s: torch.randn(*s, dtype=torch.bfloat16) * 0.05)(D, Dff)),
            "w2": _w((lambda *s: torch.randn(*s, dtype=torch.bfloat16) * 0.05)(Dff, D)),
        }
    _B_in = _B_setup()

    return {
        "A_x": _A_in["x"],
        "A_wqkv": _A_in["wqkv"],
        "A_wo": _A_in["wo"],
        "B_x": _B_in["x"],
        "B_w1": _B_in["w1"],
        "B_w2": _B_in["w2"],
    }

def reference(A_x, A_wqkv, A_wo, B_x, B_w1, B_w2):
    def _A_ref(x, wqkv, wo):
        B, S, D = x.shape
        H = 16; Dh = D // H
        qkv = (lambda x, *d: x.permute(*d))((x @ wqkv).reshape(B, S, 3, H, Dh), 2, 0, 3, 1, 4)
        q, k, v = qkv[0], qkv[1], qkv[2]
        scale = Dh ** -0.5
        scores = torch.einsum("bhqd,bhkd->bhqk", q, k) * scale
        p = _softmax(scores, axis=-1)
        o = torch.einsum("bhqk,bhkd->bhqd", p, v)
        return (lambda x, *d: x.permute(*d))(o, 0, 2, 1, 3).reshape(B, S, D) @ wo

    def _B_ref(x, w1, w2):
        h = torch.einsum("bsd,df->bsf", x, w1)
        zero = torch.zeros_like(h)
        h = torch.maximum(h, zero)
        return torch.einsum("bsf,fd->bsd", h, w2)

    x = A_x
    h = x + _A_ref(_layernorm(x, axis=-1), A_wqkv, A_wo)
    h2 = h + _B_ref(_layernorm(h, axis=-1), B_w1, B_w2)
    return h2
```

```python
import re

REG_RE = re.compile(r'\b([vsa])(\d+)\b|\b([vsa])\[(\d+):(\d+)\]|\b(vcc|exec|m0|scc)\b|\b(vcc_lo|vcc_hi|exec_lo|exec_hi)\b')
TRANS = ('v_exp_f32', 'v_log_f32', 'v_rcp_f32', 'v_rsq_f32', 'v_sqrt_f32', 'v_sin_f32', 'v_cos_f32',
         'v_exp_f16', 'v_rcp_f16', 'v_rcp_iflag_f32')


def regs_of(op):
    out = set()
    for m in REG_RE.finditer(op):
        if m.group(1):
            out.add((m.group(1), int(m.group(2))))
        elif m.group(3):
            for i in range(int(m.group(4)), int(m.group(5)) + 1):
                out.add((m.group(3), i))
        elif m.group(6):
            out.add((m.group(6), 0))
        elif m.group(7):
            out.add((m.group(7).split('_')[0], 0))
    return out


def split_ops(s):
    ops, depth, cur = [], 0, ''
    for ch in s:
        if ch == '[':
            depth += 1
        if ch == ']':
            depth -= 1
        if ch == ',' and depth == 0:
            ops.append(cur.strip())
            cur = ''
        else:
            cur += ch
    if cur.strip():
        ops.append(cur.strip())
    return ops


class Ins:
    __slots__ = ('text', 'mn', 'ops', 'rd', 'wr', 'kind', 'states', 'label', 'target', 'pad', 'srcc', 'passes', 'ab', 'data')

    def __init__(self, text):
        self.text = text
        self.label = None
        self.target = None
        self.pad = 0
        self.rd, self.wr = set(), set()
        self.srcc, self.ab, self.data = set(), set(), set()
        self.passes = 0
        t = text.split(';')[0].strip()
        if t.endswith(':'):
            self.kind = 'label'
            self.label = t[:-1]
            self.states = 0
            self.mn = ''
            return
        if not t or t.startswith('.'):
            self.kind = 'dir'
            self.states = 0
            self.mn = ''
            return
        parts = t.split(None, 1)
        mn = parts[0]
        self.mn = mn
        ops = split_ops(parts[1]) if len(parts) > 1 else []
        self.ops = ops
        self.states = 1
        R = [regs_of(o) for o in ops]
        allr = set().union(*R) if R else set()
        if mn == 's_nop':
            self.kind = 'salu'
            self.states = int(ops[0], 0) + 1
        elif mn.startswith('v_mfma'):
            self.kind = 'mfma'
            self.wr = R[0]
            self.ab = R[1] | R[2]
            self.srcc = R[3]
            self.rd = self.ab | self.srcc
            self.passes = 8 if '32x32' in mn else 4
        elif mn.startswith('v_'):
            self.kind = 'valu'
            if mn.startswith('v_cmpx'):
                self.wr = {('exec', 0)}
                self.rd = allr
            elif mn.startswith('v_permlane') and 'swap' in mn:
                self.wr = R[0] | R[1]
                self.rd = R[0] | R[1]
            elif mn.startswith('v_swap'):
                self.wr = R[0] | R[1]
                self.rd = R[0] | R[1]
            elif '_co_' in mn or mn.startswith('v_div_scale'):
                self.wr = R[0] | R[1]
                self.rd = set().union(*R[2:])
            else:
                self.wr = R[0]
                self.rd = set().union(*R[1:]) if len(R) > 1 else set()
                if mn.startswith(('v_fmac', 'v_mac', 'v_dot2c', 'v_dot4c', 'v_pk_fmac', 'v_writelane')) or 'UNUSED_PRESERVE' in t or 'op_sel' in t and mn.startswith('v_cvt'):
                    self.rd |= R[0]
                if mn.startswith('v_cndmask') and len(ops) == 3:
                    self.rd |= {('vcc', 0)}
        elif mn.startswith(('buffer_', 'global_', 'flat_')):
            self.kind = 'vmem'
            lds = re.search(r'\blds\b', t) is not None or '_lds_' in mn
            if 'wbl2' in mn or mn in ('buffer_inv',):
                pass
            elif 'load' in mn and not lds:
                self.wr = R[0]
                self.rd = set().union(*R[1:])
            elif 'load' in mn and lds:
                self.rd = allr | {('m0', 0)}
                self.kind = 'dma'
            elif 'atomic' in mn:
                self.rd = allr
                self.data = R[0] if mn.startswith('buffer_') else R[1]
                if re.search(r'\bsc0\b', t):
                    self.wr = R[0]
            else:
                self.rd = allr
                self.data = R[0] if mn.startswith('buffer_') else R[1]
        elif mn.startswith('ds_'):
            self.kind = 'ds'
            if mn.startswith(('ds_read', 'ds_bpermute', 'ds_permute', 'ds_swizzle')) or '_rtn' in mn:
                self.wr = R[0]
                self.rd = set().union(*R[1:]) if len(R) > 1 else set()
            else:
                self.rd = allr
        elif mn.startswith('s_'):
            self.kind = 'salu'
            if mn.startswith(('s_cbranch', 's_branch')):
                self.kind = 'branch'
                self.target = ops[0]
            elif mn.startswith(('s_cmp', 's_waitcnt', 's_barrier', 's_sleep', 's_setprio', 's_endpgm', 's_bitcmp', 's_sethalt')):
                self.rd = allr
            elif mn.startswith(('s_load', 's_buffer_load', 's_memtime', 's_memrealtime')):
                self.kind = 'smem'
                self.wr = R[0]
                self.rd = set().union(*R[1:]) if len(R) > 1 else set()
            else:
                self.wr = R[0] if R else set()
                self.rd = set().union(*R[1:]) if len(R) > 1 else set()
                if 'saveexec' in mn:
                    self.wr |= {('exec', 0)}
        else:
            raise ValueError('unknown instr: ' + text)


def vg(s):
    return {r for r in s if r[0] in 'va' and len(r[0]) == 1}


def sg(s):
    return {r for r in s if r[0] == 's' or r[0] == 'vcc'}


def need(p, c):
    n = 0
    if p.kind == 'mfma':
        big = p.passes == 8
        D = p.wr
        if c.kind == 'mfma':
            if c.ab & D:
                n = max(n, 12 if big else 8)
            if c.srcc & D:
                if not (c.srcc == D and c.passes == p.passes):
                    n = max(n, 10 if big else 6)
            elif c.wr & D:
                n = max(n, 10 if big else 6)
        elif c.kind in ('valu', 'vmem', 'ds', 'dma'):
            if (c.rd | c.wr) & D:
                n = max(n, 12 if big else 8)
            if c.kind == 'valu' and c.wr & p.srcc:
                n = max(n, 7 if big else 3)
            if c.kind in ('vmem', 'ds') and c.wr & p.srcc:
                n = max(n, 7 if big else 3)
    elif p.kind == 'valu':
        W = vg(p.wr)
        S = sg(p.wr)
        if c.kind == 'mfma' and c.rd & W:
            n = max(n, 3 if p.mn.startswith('v_dot') else 2)
        if c.kind == 'valu':
            if c.rd & W:
                if c.mn.startswith('v_permlane') or 'dpp' in c.text or 'row_' in c.text or 'quad_perm' in c.text:
                    n = max(n, 2)
                if c.mn.startswith(('v_readlane', 'v_readfirstlane')):
                    n = max(n, 1)
                if p.mn.startswith(TRANS) and not c.mn.startswith(TRANS):
                    n = max(n, 1)
                if 'sdwa' in p.mn or 'op_sel' in p.text:
                    n = max(n, 1)
            if p.mn.startswith('v_dot') and (c.rd | c.wr) & W:
                if not (c.mn == p.mn and not ((set().union(*[regs_of(o) for o in c.ops[1:3]])) & W)):
                    n = max(n, 3)
            if c.rd & S:
                n = max(n, 4 if c.mn.startswith(('v_readlane', 'v_writelane')) else 2)
            if ('exec', 0) in p.wr:
                n = max(n, 5)
        if c.kind in ('vmem', 'ds', 'dma'):
            if c.rd & S:
                n = max(n, 5)
            if p.mn.startswith('v_dot') and c.rd & W:
                n = max(n, 3)
            if p.mn.startswith(TRANS) and c.rd & W:
                n = max(n, 1)
        if c.kind == 'mfma' and ('exec', 0) in p.wr:
            n = max(n, 4)
        if c.kind in ('salu', 'branch', 'smem') and c.rd & S:
            n = max(n, 1)
        if c.kind == 'branch' and ('vccz' in c.mn or 'vccnz' in c.mn) and ('vcc', 0) in p.wr:
            n = max(n, 5)
    elif p.kind == 'salu':
        if ('m0', 0) in p.wr and c.kind == 'dma':
            n = max(n, 1)
    elif p.kind == 'vmem':
        if len(p.data) >= 3 and c.wr & p.data:
            n = max(n, 2 if c.kind in ('valu', 'mfma') else 1)
    return n


class Asm:
    def __init__(self):
        self.ins = []
        self.uid = 0

    def __call__(self, text):
        for line in text.split('\n'):
            if line.strip():
                self.ins.append(Ins(line.strip()))

    def label(self, name):
        self.ins.append(Ins(name + ':'))

    def newlabel(self, base='L'):
        self.uid += 1
        return f'{base}_{self.uid}'

    def _check(self, seq):
        changed = False
        I = self.ins
        for ci in range(len(seq)):
            c = I[seq[ci]]
            if c.states == 0:
                continue
            dist = c.pad
            for pi in range(ci - 1, -1, -1):
                p = I[seq[pi]]
                if p.states:
                    n = need(p, c)
                    if n > dist:
                        c.pad += n - dist
                        dist = n
                        changed = True
                dist += p.states + p.pad
                if dist >= 13:
                    break
        return changed

    def finalize(self):
        I = self.ins
        labels = {x.label: i for i, x in enumerate(I) if x.kind == 'label'}
        W = 24
        for _ in range(10):
            ch = self._check(list(range(len(I))))
            for b, x in enumerate(I):
                if x.kind == 'branch':
                    t = labels[x.target]
                    seq = list(range(max(0, b - W), b + 1)) + list(range(t, min(len(I), t + W)))
                    ch |= self._check(seq)
            if not ch:
                break
        out = []
        npad = 0
        for x in I:
            p = x.pad
            npad += 1 if p else 0
            while p > 0:
                k = min(p, 16)
                out.append(f'    s_nop {k - 1}')
                p -= k
            out.append(x.text if x.kind in ('label', 'dir') else '    ' + x.text)
        self.npad = npad
        return '\n'.join(out) + '\n'
```

```python
import sys, os, math, struct
sys.path.insert(0, os.path.dirname(os.path.abspath(__file__)))
from asmdsl import Asm

NAME = "sequential_preLN__softmax_full_mha__dense_activation_relu__prompt"
KN = NAME + "_kernel"

MB = 1 << 20
WS_KV = 0
WS_O = 4 * MB
WS_H1 = 6 * MB
WS_H = 8 * MB
WS_WO = 16 * MB
WS_W1 = 17 * MB
WS_W2A = 19 * MB
WS_W2B = 20 * MB
WS_ST = 21 * MB
WS_Q = 22 * MB
WS_FLAG = 24 * MB
WS_DBG = 26 * MB
WS_SIZE = 32 * MB

L_X = 0
L_W = 81920
L_MISC = 143360
L_SUM = L_MISC
L_CS = L_MISC + 1024
L_RS = L_MISC + 2048
L_CS2 = L_MISC + 1024
L_ST2 = L_MISC + 3072
L_WF = L_MISC + 4096
L_R0 = 0
L_R1 = 57344
LDS_SIZE = 163840

SX, SWQ, SWO, SW1, SW2, SOUT, SWS, SDBG = ("s[4:7]", "s[8:11]", "s[12:15]", "s[16:19]", "s[20:23]",
                                           "s[24:27]", "s[28:31]", "s[32:35]")
sT, sM, sWV, sSUB = "s36", "s37", "s38", "s39"
sNON = "s[40:41]"
sHI = "s[42:43]"
sPAD = "s[44:45]"
sWG = "s46"
sH1, sR1 = "s62", "s63"
POLLW = 3

LOG2E = 1.4426950408889634
QSCALE = (28 ** -0.5) * LOG2E


def f2u(x):
    return struct.unpack("<I", struct.pack("<f", x))[0]


def vr(b, n=1):
    return f"v{b}" if n == 1 else f"v[{b}:{b + n - 1}]"


BUF, ACC, CSR = 8, 24, 56
W1R = lambda s: 72 + 4 * s
WOR = lambda s: 160 + 4 * s if s < 24 else 40 + 4 * (s - 24)
W2R = lambda f: 184 + 4 * f if f < 18 else 72 + 4 * (f - 18)


class Gen:
    def __init__(self, stop=99, stamp=False, force_fb=False, **kw):
        self.a = Asm()
        self.stop = stop
        self.stamp = stamp
        self.force_fb = force_fb
        self.nstamp = 0
        self.p1ts = False
        self.pf_depth = 12
        self.p1_ahead = 3
        self.p5_ahead = 4
        self.l2pf = True
        self.__dict__.update(kw)

    def mfma(self, d, a_, b_, c=None):
        cs = vr(c, 16) if isinstance(c, int) else (vr(d, 16) if c is None else c)
        self.a(f"v_mfma_f32_32x32x16_bf16 {vr(d, 16)}, {vr(a_, 4)}, {vr(b_, 4)}, {cs}")

    def mfma16(self, d, a_, b_, c=None):
        cs = vr(d, 4) if c is None else c
        self.a(f"v_mfma_f32_16x16x32_bf16 {vr(d, 4)}, {vr(a_, 4)}, {vr(b_, 4)}, {cs}")

    def ts(self, idx):
        if not self.stamp:
            return
        a = self.a
        a("s_memtime s[60:61]")
        a("s_waitcnt lgkmcnt(0)")
        a(f"s_mov_b32 s{96 if idx == 0 else 64 + idx}, s60")
        self.nstamp = max(self.nstamp, idx + 1)

    def ts_flush(self):
        if not self.stamp:
            return
        a = self.a
        a("v_mov_b32 v4, 0")
        for idx in range(self.nstamp):
            a(f"v_writelane_b32 v4, s{96 if idx == 0 else 64 + idx}, {idx}")
        a(f"s_lshl_b32 s60, {sWG}, 3")
        a(f"s_add_u32 s60, s60, {sWV}")
        a("s_lshl_b32 s60, s60, 8")
        a(f"s_add_u32 s60, s60, {WS_DBG}")
        a("v_lshlrev_b32 v5, 2, v0")
        a(f"buffer_store_dword v4, v5, {SWS}, s60 offen")

    def srd(self, base, ptr, nbytes):
        a = self.a
        a(f"s_mov_b32 s{base}, s{ptr}")
        a(f"s_mov_b32 s{base + 1}, s{ptr + 1}")
        a(f"s_mov_b32 s{base + 2}, {nbytes}")
        a(f"s_mov_b32 s{base + 3}, 0x00020000")

    def selector(self, r):
        a = self.a
        a("s_mov_b32 s48, 0x00020001")
        a("s_mov_b32 s49, 0x00020001")
        a("v_mov_b32 v4, 0x3f803f80")
        a(f"v_cndmask_b32 v{r}, 0, v4, s[48:49]")
        for i in range(1, 4):
            a(f"v_mov_b32 v{r + i}, v{r}")

    def poll(self, nl, base_sgpr, phase, sleep=0):
        a = self.a
        a(f"v_min_u32 v4, {nl - 1}, v0")
        a(f"v_add_lshl_u32 v4, v4, {base_sgpr}, 3")
        self.poll_loop(phase, sleep)

    def poll_loop(self, phase, sleep=0):
        a = self.a
        a(f"s_mov_b32 s47, {WS_FLAG + phase * 4096}")
        a("s_mov_b32 s48, 0")
        Lp = a.newlabel("Lpoll")
        Ld = a.newlabel("Lpd")
        a.label(Lp)
        a(f"buffer_load_dwordx2 v[6:7], v4, {SWS}, s47 offen sc1")
        a("s_waitcnt vmcnt(0)")
        a(f"v_cmp_ne_u64 vcc, {sNON}, v[6:7]")
        a(f"s_cbranch_vccz {Ld}")
        if sleep:
            a(f"s_sleep {sleep}")
        a("s_add_u32 s48, s48, 1")
        a("s_cmp_lt_u32 s48, 0x40000")
        a(f"s_cbranch_scc1 {Lp}")
        a.label(Ld)

    def handoff(self, phase, isB, myidx, nl, pollidx, between=None, vm=0):
        a = self.a
        a(f"s_waitcnt vmcnt({vm})")
        a("s_barrier")
        if not isB:
            L = a.newlabel("Lho")
            L2 = a.newlabel("Lho2")
            a(f"s_cmp_lg_u32 {sWV}, {POLLW}")
            a(f"s_cbranch_scc1 {L}")
            myidx()
            a("s_lshl_b32 s47, s49, 3")
            a(f"s_add_u32 s47, s47, {WS_FLAG + phase * 4096}")
            a("v_mov_b32 v4, s40")
            a("v_mov_b32 v5, s41")
            a("v_mov_b32 v6, 0")
            a("s_mov_b64 exec, 1")
            a(f"buffer_store_dwordx2 v[4:5], v6, {SWS}, s47 offen sc1")
            a("s_mov_b64 exec, -1")
            if nl:
                pollidx()
                self.poll(nl, "s49", phase)
            a(f"s_branch {L2}")
            a.label(L)
            if between:
                between()
            a.label(L2)
        elif between:
            between()
        if nl:
            a("s_barrier")

    def stats(self, vs, vq):
        a = self.a
        a(f"v_mul_f32 v{vs}, {hex(f2u(1.0 / 448))}, v{vs}")
        a(f"v_mul_f32 v{vq}, {hex(f2u(1.0 / 448))}, v{vq}")
        a(f"v_fma_f32 v{vq}, -v{vs}, v{vs}, v{vq}")
        a(f"v_max_f32 v{vq}, 0, v{vq}")
        a(f"v_add_f32 v{vq}, {hex(f2u(1e-5))}, v{vq}")
        a(f"v_rsq_f32 v{vq}, v{vq}")
        a(f"v_mul_f32 v{vs}, v{vs}, v{vq}")
        a(f"v_sub_f32 v{vs}, 0, v{vs}")

    def prologue(self):
        a = self.a
        a("s_cmp_ge_u32 s2, 256")
        a("s_cbranch_scc1 Lend")
        a("s_load_dwordx16 s[64:79], s[0:1], 0")
        a("s_load_dwordx2 s[80:81], s[0:1], 64")
        a(f"s_mov_b32 {sWG}, s2")
        a("v_lshrrev_b32 v1, 6, v0")
        a("v_and_b32 v0, 63, v0")
        a(f"v_readfirstlane_b32 {sWV}, v1")
        a("s_and_b32 s47, s2, 3")
        a("s_lshl_b32 s47, s47, 2")
        a("s_bfe_u32 s48, s2, 0x20003")
        a(f"s_add_u32 {sR1}, s47, s48")
        a("s_bfe_u32 s47, s2, 0x10002")
        a("s_lshl_b32 s47, s47, 3")
        a("s_lshr_b32 s48, s2, 5")
        a(f"s_add_u32 {sH1}, s47, s48")
        a(f"s_and_b32 {sSUB}, {sWV}, 3")
        a("v_lshlrev_b32 v1, 4, v0")
        a("v_lshrrev_b32 v4, 3, v0")
        a("v_and_b32 v5, 7, v0")
        a("v_lshrrev_b32 v6, 4, v0")
        a("v_xor_b32 v5, v5, v6")
        a(f"s_lshl_b32 s47, {sR1}, 7")
        a(f"s_lshl_b32 s48, {sWV}, 4")
        a("s_add_u32 s47, s47, s48")
        a("v_add_u32 v4, s47, v4")
        a("v_mul_u32_u24 v4, 0x380, v4")
        a("v_lshl_add_u32 v8, v5, 4, v4")
        a("v_xor_b32 v5, 4, v5")
        a("v_lshl_add_u32 v9, v5, 4, v4")
        a("v_add_u32 v9, 0x1c00, v9")
        a(f"s_mul_i32 s48, {sH1}, 56")
        a("s_and_b32 s48, s48, 0xfff0")
        for dst, first in ((10, True), (11, False)):
            if first:
                a(f"s_lshl_b32 s47, {sWV}, 6")
            else:
                a(f"s_lshl_b32 s47, {sSUB}, 6")
                a("s_add_u32 s47, s47, 512")
            a("v_add_u32 v4, s47, v0")
            a("v_mul_u32_u24 v5, 0xaaab, v4")
            a("v_lshrrev_b32 v5, 19, v5")
            a("v_mul_u32_u24 v6, 12, v5")
            a("v_sub_u32 v6, v4, v6")
            a("v_lshrrev_b32 v7, 2, v6")
            a("v_and_b32 v6, 3, v6")
            a("v_mul_u32_u24 v5, 0xa80, v5")
            a("v_mul_u32_u24 v7, 0x380, v7")
            a("v_add3_u32 v5, v5, v7, s48")
            a(f"v_lshl_add_u32 v{dst}, v6, 4, v5")
        a(f"s_lshl_b32 s50, {sWV}, 11")
        a(f"s_lshl_b32 s51, {sWV}, 10")
        a(f"s_add_u32 s51, s51, {L_W}")
        a(f"s_lshl_b32 s52, {sSUB}, 10")
        a(f"s_add_u32 s52, s52, {L_W + 8192}")
        a("s_waitcnt lgkmcnt(0)")
        self.srd(4, 64, 2048 * 896)
        self.srd(8, 66, 448 * 2688)

    def p1_dma(self, c, isB):
        a = self.a
        slot = c % 5
        a(f"s_mov_b32 s53, {128 * c}")
        a(f"s_mov_b32 s54, {64 * 2688 * c}")
        a(f"s_add_u32 m0, s50, {L_X + slot * 16384}")
        a(f"buffer_load_dwordx4 v8, {SX}, s53 offen lds")
        a(f"s_add_u32 m0, s50, {L_X + slot * 16384 + 1024}")
        a(f"buffer_load_dwordx4 v9, {SX}, s53 offen lds")
        a(f"s_add_u32 m0, s51, {slot * 12288}")
        a(f"buffer_load_dwordx4 v10, {SWQ}, s54 offen lds")
        if isB:
            a(f"s_add_u32 m0, s52, {slot * 12288}")
            a(f"buffer_load_dwordx4 v11, {SWQ}, s54 offen lds")

    def prologue2(self):
        a = self.a
        self.srd(12, 68, 448 * 896)
        self.srd(16, 72, 448 * 3584)
        self.srd(20, 74, 1792 * 896)
        self.srd(24, 76, 2048 * 896)
        self.srd(28, 80, WS_SIZE)
        self.srd(32, 78, 256)
        a(f"s_and_b32 {sT}, {sWG}, 7")
        a(f"s_lshr_b32 s47, {sWG}, 7")
        a("s_lshl_b32 s47, s47, 3")
        a(f"s_add_u32 {sT}, {sT}, s47")
        a(f"s_bfe_u32 {sM}, {sWG}, 0x40003")
        a("v_and_b32 v2, 31, v0")
        a("v_lshrrev_b32 v3, 5, v0")
        a("s_mov_b32 s42, 0")
        a("s_mov_b32 s43, -1")
        a("s_mov_b32 s44, 0xF0000000")
        a("s_mov_b32 s45, 0xF0000000")
        a("v_bfe_u32 v4, v2, 1, 3")
        a("v_xor_b32 v4, v4, v3")
        a("v_lshlrev_b32 v4, 4, v4")
        a(f"s_lshl_b32 s47, {sSUB}, 12")
        a("v_lshl_add_u32 v4, v2, 7, v4")
        a("v_add_u32 v12, s47, v4")
        for s in range(1, 4):
            a(f"v_xor_b32 v{12 + s}, {s << 5}, v12")
        for s in range(4):
            a(f"v_add_u32 v{16 + s}, 0x10000, v{12 + s}")
        a("v_bfe_u32 v4, v0, 2, 2")
        a("v_lshl_add_u32 v4, v3, 3, v4")
        a("v_mul_u32_u24 v4, 192, v4")
        a("v_bfe_u32 v5, v0, 4, 1")
        a("v_lshl_add_u32 v4, v5, 5, v4")
        a("v_and_b32 v5, 3, v0")
        a("v_lshl_add_u32 v4, v5, 3, v4")
        a(f"s_and_b32 s47, {sH1}, 1")
        a("s_lshl_b32 s47, s47, 3")
        a(f"s_add_u32 s47, s47, {L_W}")
        a("v_add_u32 v20, s47, v4")
        a("s_mov_b32 s55, 0x3f803f80")
        self.selector(56)
        if self.stamp:
            for i in range(65, 82):
                a(f"s_mov_b32 s{i}, 0")

    def p1(self, isB):
        a = self.a
        npc = 4 if isB else 3
        AH = self.p1_ahead
        for c in range(AH):
            self.p1_dma(c, isB)
        self.prologue2()
        if self.p1ts:
            self.ts(7)
        if isB:
            L = a.newlabel("Lnn")
            a(f"s_cmp_lg_u32 {sWV}, 4")
            a(f"s_cbranch_scc1 {L}")
            for r in range(4, 8):
                a(f"v_mov_b32 v{r}, 0")
            a(f"v_add_u32 v22, {L_SUM}, v1")
            a("ds_write_b128 v22, v[4:7]")
            a("ds_write_b128 v22, v[4:7] offset:1024")
            a.label(L)
            self.wf_setup()
        ACC0, ACC1 = 64, 80
        XF = [24, 28]
        WF = [[32, 36], [40, 44]]
        CS = [96, 100]
        SEL = 56
        nm = 1 if isB else 2
        moff = [128] if isB else [0, 64]
        for r in range(48, 52):
            a(f"v_mov_b32 v{r}, 0")
        for r in range(96, 104):
            a(f"v_mov_b32 v{r}, 0")
        log = []
        for c in range(AH):
            log += [c] * npc

        def wait_chunk(c):
            last = max(i for i, x in enumerate(log) if x == c)
            a(f"s_waitcnt vmcnt({len(log) - 1 - last})")

        def reads(c, s, buf):
            slot = c % 5
            if slot < 4:
                a(f"ds_read_b128 {vr(XF[buf], 4)}, v{12 + s} offset:{slot * 16384}")
            else:
                a(f"ds_read_b128 {vr(XF[buf], 4)}, v{16 + s}")
            for mi in range(nm):
                for u in range(2):
                    off = slot * 12288 + (16 * s + 4 * u) * 192 + moff[mi]
                    a(f"ds_read_b64_tr_b16 {vr(WF[buf][mi] + 2 * u, 2)}, v20 offset:{off}")
        nrd = 1 + 2 * nm

        def sync(c):
            wait_chunk(c)
            if self.p1ts:
                self.ts(8 + c)
            a("s_barrier")
            n = c + AH
            if n < 7:
                self.p1_dma(n, isB)
                log.extend([n] * npc)
            if n == 6:
                a("v_mov_b32 v4, 0")
                a(f"buffer_load_dwordx2 v[52:53], v4, {SDBG}, 0 offen sc1")
                log.append('x')
                if isB:
                    self.wf_dma()
                    log.extend(['w'] * 4)
        sync(0)
        reads(0, 0, 0)
        for c in range(7):
            for s in range(4):
                buf = s & 1
                if s == 2 and c < 6:
                    sync(c + 1)
                if s < 3:
                    reads(c, s + 1, buf ^ 1)
                    a(f"s_waitcnt lgkmcnt({nrd})")
                elif c < 6:
                    reads(c + 1, 0, buf ^ 1)
                    a(f"s_waitcnt lgkmcnt({nrd})")
                else:
                    a("s_waitcnt lgkmcnt(0)")
                first = (c == 0 and s == 0)
                cin = "0" if first else None
                js = (2, 3) if isB else (0, 1)

                def st(j):
                    a(f"v_lshlrev_b32 v4, 16, v{XF[buf] + j}")
                    a(f"v_and_b32 v5, 0xffff0000, v{XF[buf] + j}")
                    a("v_add_f32 v48, v48, v4")
                    a("v_fmac_f32 v49, v4, v4")
                    a("v_add_f32 v50, v50, v5")
                    a("v_fmac_f32 v51, v5, v5")
                if isB:
                    self.mfma(ACC0, XF[buf], WF[buf][0], cin)
                    st(js[0])
                    st(js[1])
                else:
                    self.mfma(ACC0, WF[buf][0], XF[buf], cin)
                    st(js[0])
                    self.mfma(ACC1, WF[buf][1], XF[buf], cin)
                    st(js[1])
                L = a.newlabel("Lcs")
                a(f"s_cmp_lg_u32 {sSUB}, {s}")
                a(f"s_cbranch_scc1 {L}")
                for mi in range(nm):
                    self.mfma16(CS[mi], SEL, WF[buf][mi])
                a.label(L)
        self.ts(1)
        a("v_add_f32 v48, v48, v50")
        a("v_add_f32 v49, v49, v51")
        a(f"s_lshl_b32 s47, {sSUB}, 8")
        a(f"s_add_u32 s47, s47, {L_SUM}")
        a("v_lshl_add_u32 v22, v2, 3, s47")
        a("ds_add_f32 v22, v48")
        a("ds_add_f32 v22, v49 offset:4")
        a("v_lshlrev_b32 v4, 2, v2")
        a(f"v_add_u32 v5, {L_CS + (256 if isB else 0)}, v4")
        a("s_mov_b64 exec, 0xffff")
        for mi in range(nm):
            a(f"ds_add_f32 v5, v{CS[mi]} offset:{128 * mi}")
            a(f"ds_add_f32 v5, v{CS[mi] + 1} offset:{128 * mi + 64}")
        a("s_mov_b64 exec, -1")
        a(f"s_lshl_b32 s56, {sH1}, 6")
        a(f"s_lshl_b32 s47, {sR1}, 2")
        a("s_add_u32 s56, s56, s47")
        a(f"s_add_u32 s56, s56, {sSUB}")
        a("s_lshl_b32 s57, s56, 11")
        a(f"s_add_u32 s57, s57, {WS_Q}")
        a("s_lshl_b32 s56, s56, 12")
        a("s_waitcnt lgkmcnt(0)")
        a("s_barrier")
        a("ds_read_b64 v[48:49], v22")
        if isB:
            a("ds_read_b32 v50, v5")
            a("v_cmp_eq_u32 vcc, 28, v2")
            a("v_mov_b32 v6, 0")
            a("v_mov_b32 v7, s55")
            a("v_cndmask_b32 v6, v6, v7, vcc")
            a(f"s_lshl_b32 s47, {sSUB}, 8")
            a(f"s_add_u32 s47, s47, {L_RS}")
            a("v_add_u32 v5, s47, v4")
            a("v_lshl_add_u32 v7, v3, 4, s47")
            a("s_waitcnt lgkmcnt(0)")
            self.stats(48, 49)
            a("ds_write_b32 v5, v49")
            a("ds_write_b32 v5, v48 offset:128")
            for q in range(4):
                a(f"ds_read_b128 {vr(96 + 4 * q, 4)}, v7 offset:{32 * q}")
                a(f"ds_read_b128 {vr(112 + 4 * q, 4)}, v7 offset:{128 + 32 * q}")
            self.wformat_reads()
            a("s_waitcnt lgkmcnt(8)")
            for r in range(16):
                a(f"v_mul_f32 v{ACC0 + r}, v{ACC0 + r}, v{96 + r}")
                a(f"v_fmac_f32 v{ACC0 + r}, v50, v{112 + r}")
            for p in range(8):
                a(f"v_cvt_pk_bf16_f32 v{24 + p}, v{ACC0 + 2 * p}, v{ACC0 + 2 * p + 1}")
                a(f"v_cndmask_b32 v{24 + p}, v{24 + p}, v6, {sPAD}")
            a(f"buffer_store_dwordx4 v[24:27], v1, {SWS}, s56 offen offset:2048 sc1")
            a(f"buffer_store_dwordx4 v[28:31], v1, {SWS}, s56 offen offset:3072 sc1")
            self.wformat_stores()
        else:
            a("v_lshlrev_b32 v5, 4, v3")
            a(f"v_add_u32 v5, {L_CS}, v5")
            for q in range(4):
                a(f"ds_read_b128 {vr(112 + 4 * q, 4)}, v5 offset:{128 + 32 * q}")
            for q in range(4):
                a(f"ds_read_b128 {vr(96 + 4 * q, 4)}, v5 offset:{32 * q}")
            a("s_waitcnt lgkmcnt(8)")
            self.stats(48, 49)
            a("s_waitcnt lgkmcnt(4)")
            for r in range(16):
                a(f"v_mul_f32 v{ACC1 + r}, v{ACC1 + r}, v49")
                a(f"v_fmac_f32 v{ACC1 + r}, v48, v{112 + r}")
            for p in range(8):
                a(f"v_cvt_pk_bf16_f32 v{24 + p}, v{ACC1 + 2 * p}, v{ACC1 + 2 * p + 1}")
            a("v_mov_b32 v6, s55")
            a("v_mov_b32 v7, 0x3f80")
            a(f"v_cndmask_b32 v30, v30, v6, {sHI}")
            a(f"v_cndmask_b32 v31, v31, v7, {sHI}")
            a(f"buffer_store_dwordx4 v[24:27], v1, {SWS}, s56 offen sc1")
            a(f"buffer_store_dwordx4 v[28:31], v1, {SWS}, s56 offen offset:1024 sc1")
            a("s_waitcnt lgkmcnt(0)")
            a(f"v_mul_f32 v48, {hex(f2u(QSCALE))}, v48")
            a(f"v_mul_f32 v49, {hex(f2u(QSCALE))}, v49")
            for r in range(16):
                a(f"v_mul_f32 v{ACC0 + r}, v{ACC0 + r}, v49")
                a(f"v_fmac_f32 v{ACC0 + r}, v48, v{96 + r}")
            for p in range(8):
                a(f"v_cvt_pk_bf16_f32 v{32 + p}, v{ACC0 + 2 * p}, v{ACC0 + 2 * p + 1}")
            a(f"buffer_store_dwordx4 v[32:35], v1, {SWS}, s57 offen sc1")
            a(f"v_cndmask_b32 v38, v38, 0, {sHI}")
            a(f"v_cndmask_b32 v39, v39, 0, {sHI}")
            self.mfma(ACC0, 24, 32, "0")
            self.mfma(ACC0, 28, 36)
            a(f"v_max3_f32 v4, v{ACC0}, v{ACC0 + 1}, v{ACC0 + 2}")
            for r in range(3, 15, 2):
                a(f"v_max3_f32 v4, v4, v{ACC0 + r}, v{ACC0 + r + 1}")
            a(f"v_max_f32 v4, v4, v{ACC0 + 15}")
            a("v_mov_b32 v5, v4")
            a("v_permlane32_swap_b32 v4, v5")
            a("v_max_f32 v4, v4, v5")
            a("v_sub_f32 v4, 0, v4")
            a("v_cvt_pk_bf16_f32 v4, v4, 0")
            a(f"v_cndmask_b32 v38, v38, v4, {sHI}")
            a(f"buffer_store_dwordx4 v[36:39], v1, {SWS}, s57 offen offset:1024 sc1")
        self.nonce_wait()

    def nonce_wait(self):
        a = self.a
        Lok = a.newlabel("Lnok")
        Lp = a.newlabel("Lnp")
        a("s_mov_b32 s48, 0")
        a("v_mov_b32 v4, 0")
        a.label(Lp)
        a("s_waitcnt vmcnt(0)")
        a("v_readfirstlane_b32 s40, v52")
        a("v_readfirstlane_b32 s41, v53")
        a("s_or_b32 s47, s40, s41")
        a("s_cmp_lg_u32 s47, 0")
        a(f"s_cbranch_scc1 {Lok}")
        a(f"buffer_load_dwordx2 v[52:53], v4, {SDBG}, 0 offen sc1")
        a("s_add_u32 s48, s48, 1")
        a("s_cmp_lt_u32 s48, 0x40000")
        a(f"s_cbranch_scc1 {Lp}")
        a.label(Lok)

    def nonce_write(self):
        a = self.a
        L = a.newlabel("Lnw")
        a(f"s_cmp_lg_u32 {sWG}, 0")
        a(f"s_cbranch_scc1 {L}")
        a(f"s_cmp_lg_u32 {sWV}, 7")
        a(f"s_cbranch_scc1 {L}")
        self.srd(32, 78, 256)
        a("s_memrealtime s[40:41]")
        a("s_waitcnt lgkmcnt(0)")
        a("s_or_b32 s40, s40, 1")
        a("v_mov_b32 v4, s40")
        a("v_mov_b32 v5, s41")
        a("v_mov_b32 v6, 0")
        a("s_mov_b64 exec, 1")
        a(f"buffer_store_dwordx2 v[4:5], v6, {SDBG}, 0 offen sc1")
        a("s_mov_b64 exec, -1")
        a("s_waitcnt vmcnt(0)")
        a.label(L)

    def wf_setup(self):
        a = self.a
        L1, L2, Ld = [a.newlabel("Lwf") for _ in range(3)]
        a(f"s_lshl_b32 s82, {sH1}, 4")
        a(f"s_add_u32 s82, s82, {sR1}")
        a("s_mov_b64 s[84:85], s[12:13]")
        a("s_mov_b64 s[86:87], s[14:15]")
        a("s_mov_b32 s83, 896")
        a("s_mov_b32 s94, 0")
        a("s_mov_b32 s95, 4")
        a("s_cmp_ge_u32 s82, 32")
        a(f"s_cbranch_scc1 {L1}")
        a("s_lshr_b32 s47, s82, 1")
        a("s_mul_i32 s47, s47, 28")
        a("s_and_b32 s48, s82, 1")
        a("s_lshl_b32 s48, s48, 4")
        a("s_add_u32 s47, s47, s48")
        a("s_mul_i32 s88, s47, 896")
        a(f"s_mul_i32 s47, {sSUB}, 224")
        a("s_add_u32 s88, s88, s47")
        a(f"s_lshl_b32 s47, {sSUB}, 7")
        a("s_add_u32 s47, s47, s82")
        a("s_lshl_b32 s47, s47, 10")
        a(f"s_add_u32 s90, s47, {WS_WO}")
        a("s_add_u32 s91, s90, 0x8000")
        a("s_add_u32 s92, s91, 0x8000")
        a("s_add_u32 s93, s92, 0x8000")
        a(f"s_branch {Ld}")
        a.label(L1)
        a("s_cmp_ge_u32 s82, 144")
        a(f"s_cbranch_scc1 {L2}")
        a("s_mov_b64 s[84:85], s[16:17]")
        a("s_mov_b64 s[86:87], s[18:19]")
        a("s_mov_b32 s83, 3584")
        a("s_sub_u32 s49, s82, 32")
        a("s_mul_i32 s47, s49, 2341")
        a("s_lshr_b32 s47, s47, 16")
        a("s_mul_i32 s48, s47, 28")
        a("s_sub_u32 s48, s49, s48")
        a(f"s_mul_i32 s88, s48, {16 * 3584}")
        a("s_mul_i32 s49, s47, 896")
        a("s_add_u32 s88, s88, s49")
        a(f"s_lshl_b32 s49, {sSUB}, 8")
        a("s_add_u32 s88, s88, s49")
        a("s_mul_i32 s47, s47, 14")
        a(f"s_lshl_b32 s49, {sSUB}, 2")
        a("s_add_u32 s47, s47, s49")
        a("s_mul_i32 s47, s47, 28")
        a("s_add_u32 s47, s47, s48")
        a("s_lshl_b32 s47, s47, 10")
        a(f"s_add_u32 s90, s47, {WS_W1}")
        a(f"s_add_u32 s91, s90, {28 * 1024}")
        a(f"s_add_u32 s92, s91, {28 * 1024}")
        a(f"s_add_u32 s93, s92, {28 * 1024}")
        a(f"s_cmp_eq_u32 {sSUB}, 3")
        a("s_cselect_b32 s95, 2, 4")
        a(f"s_branch {Ld}")
        a.label(L2)
        a("s_mov_b64 s[84:85], s[20:21]")
        a("s_mov_b64 s[86:87], s[22:23]")
        a("s_mov_b32 s94, 1")
        a("s_sub_u32 s48, s82, 144")
        a(f"s_mul_i32 s88, s48, {16 * 896}")
        a(f"s_mul_i32 s47, {sSUB}, 224")
        a("s_add_u32 s88, s88, s47")
        a("s_add_u32 s47, s47, s48")
        a("s_lshl_b32 s90, s47, 10")
        a(f"s_add_u32 s90, s90, {WS_W2A}")
        a(f"s_add_u32 s92, s90, {112 * 1024}")
        a("s_mul_i32 s91, s47, 768")
        a(f"s_add_u32 s91, s91, {WS_W2B}")
        a(f"s_add_u32 s93, s91, {112 * 768}")
        a.label(Ld)
        a("s_lshl_b32 s89, s83, 2")
        a("v_lshrrev_b32 v4, 4, v0")
        a("v_mul_lo_u32 v4, v4, s83")
        a("v_and_b32 v5, 15, v0")
        a("v_lshl_add_u32 v21, v5, 4, v4")

    def wf_dma(self):
        a = self.a
        a(f"s_lshl_b32 s47, {sSUB}, 12")
        for i in range(4):
            a(f"s_add_u32 m0, s47, {L_WF + 1024 * i}")
            a("buffer_load_dwordx4 v21, s[84:87], s88 offen lds")
            if i < 3:
                a("s_add_u32 s88, s88, s89")

    def wformat_reads(self):
        a = self.a
        R = 128
        a("v_bfe_u32 v21, v0, 2, 2")
        a("v_lshl_add_u32 v21, v3, 2, v21")
        a("v_lshlrev_b32 v21, 8, v21")
        a("v_bfe_u32 v23, v0, 4, 1")
        a("v_lshl_add_u32 v21, v23, 5, v21")
        a("v_and_b32 v23, 3, v0")
        a("v_lshl_add_u32 v21, v23, 3, v21")
        a(f"s_lshl_b32 s47, {sSUB}, 12")
        a(f"s_add_u32 s47, s47, {L_WF}")
        a("v_add_u32 v21, s47, v21")
        a("s_lshl_b32 s47, s94, 4")
        a("v_subrev_u32 v23, s47, v21")
        a("s_waitcnt vmcnt(0)")
        for f in range(4):
            for u in range(2):
                a(f"ds_read_b64_tr_b16 {vr(R + 4 * f + 2 * u, 2)}, v{21 if f < 2 else 23} offset:{8 * u * 256 + 64 * f}")

    def wformat_stores(self):
        a = self.a
        R = 128
        L = a.newlabel("Lwfs")
        a("v_mul_u32_u24 v5, 24, v3")
        a("v_add_u32 v5, v5, v2")
        a("v_lshlrev_b32 v5, 4, v5")
        a("s_cmp_eq_u32 s94, 1")
        a("s_cselect_b64 vcc, -1, 0")
        a("s_cselect_b32 s48, 0x00ffffff, -1")
        a("s_mov_b32 s49, s48")
        a("v_cndmask_b32 v5, v1, v5, vcc")
        a("s_waitcnt lgkmcnt(0)")
        for f in range(4):
            if f == 2:
                a("s_cmp_eq_u32 s95, 2")
                a(f"s_cbranch_scc1 {L}")
            if f & 1:
                a("s_mov_b64 exec, s[48:49]")
            a(f"buffer_store_dwordx4 {vr(R + 4 * f, 4)}, v{5 if f & 1 else 1}, {SWS}, s{90 + f} offen sc1")
            if f & 1:
                a("s_mov_b64 exec, -1")
        a.label(L)

    def p2(self):
        a = self.a
        Q = 16
        O = 48
        S = [112, 128]
        P = [144, 152]
        KV = [160, 176, 192, 208]
        a(f"s_lshl_b32 s47, {sT}, 6")
        a(f"s_add_u32 s47, s47, {sSUB}")
        a("s_lshl_b32 s47, s47, 12")
        a("v_add_u32 v6, s47, v1")
        a(f"s_lshl_b32 s50, {sM}, 14")
        a("s_mov_b32 s51, 0")
        a(f"s_lshl_b32 s49, {sT}, 4")
        a(f"s_add_u32 s49, s49, {sM}")
        a("s_lshl_b32 s49, s49, 13")
        a(f"s_add_u32 s49, s49, {WS_Q}")

        def adv():
            a("s_add_u32 s50, s50, 0x4000")
            a("s_and_b32 s50, s50, 0x3ffff")
            a("s_add_u32 s51, s51, 1")
            a("s_cmp_ge_u32 s51, 16")
            a("s_cselect_b32 s52, 0x7ff00000, s50")

        def ld(buf, f):
            a(f"buffer_load_dwordx4 {vr(KV[buf] + 4 * f, 4)}, v6, {SWS}, s52 offen offset:{1024 * f} sc1")

        def ldq(i):
            a(f"s_add_u32 s47, {sSUB}, {i}")
            a("s_and_b32 s47, s47, 3")
            a("s_lshl_b32 s47, s47, 11")
            a("s_add_u32 s47, s47, s49")
            a(f"buffer_load_dwordx4 {vr(Q + 8 * i, 4)}, v1, {SWS}, s47 offen sc1")
            a(f"buffer_load_dwordx4 {vr(Q + 8 * i + 4, 4)}, v1, {SWS}, s47 offen offset:1024 sc1")
        a("s_mov_b32 s52, s50")
        for i in range(4):
            ldq(i)
        a.label("Lattn")
        for t in range(3):
            for f in range(4):
                ld(t, f)
            adv()
        for r in range(64):
            a(f"v_mov_b32 v{O + r}, 0")
        for r in range(8):
            a(f"v_mov_b32 v{P[1] + r}, 0")
            a(f"v_mov_b32 v{KV[3] + 8 + r}, 0")
        a("s_mov_b32 s53, 0")
        a("s_waitcnt vmcnt(8)")
        self.mfma(S[0], KV[0], Q, "0")
        self.mfma(S[0], KV[0] + 4, Q + 4)
        a.label("Lloop")
        for t in range(4):
            for q in range(4):
                u = 4 * t + q
                sc, sn = S[u & 1], S[(u + 1) & 1]
                pc, pp = P[u & 1], P[(u + 1) & 1]
                tn, qn = (t, q + 1) if q < 3 else ((t + 1) & 3, 0)
                tp, qp = (t, q - 1) if q > 0 else ((t - 1) & 3, 3)
                mf = [
                    lambda: self.mfma(sn, KV[tn], Q + 8 * qn, "0"),
                    lambda: self.mfma(O + 16 * qp, KV[tp] + 8, pp),
                    lambda: self.mfma(sn, KV[tn] + 4, Q + 8 * qn + 4),
                    lambda: self.mfma(O + 16 * qp, KV[tp] + 12, pp + 4),
                ]
                for g in range(4):
                    if g == 0 and q == 3:
                        a("s_waitcnt vmcnt(7)")
                    mf[g]()
                    if g == 1:
                        ld((t + 3) & 3, q)
                        if q == 3:
                            adv()
                    for i in range(4):
                        a(f"v_exp_f32 v{sc + 4 * g + i}, v{sc + 4 * g + i}")
                    if g > 0:
                        for i in range(2):
                            r = 4 * (g - 1) + 2 * i
                            a(f"v_cvt_pk_bf16_f32 v{pc + r // 2}, v{sc + r}, v{sc + r + 1}")
                for i in range(2):
                    r = 12 + 2 * i
                    a(f"v_cvt_pk_bf16_f32 v{pc + r // 2}, v{sc + r}, v{sc + r + 1}")
        a("s_add_u32 s53, s53, 1")
        a("s_cmp_lt_u32 s53, 4")
        a("s_cbranch_scc1 Lloop")
        self.mfma(O + 48, KV[3] + 8, P[1])
        self.mfma(O + 48, KV[3] + 12, P[1] + 4)
        self.ts(4)
        for i in range(1, 4):
            a(f"s_add_u32 s47, {sSUB}, {i}")
            a("s_and_b32 s47, s47, 3")
            a("s_mul_i32 s47, s47, 12288")
            a("v_add_u32 v5, s47, v1")
            for k in range(4):
                a(f"ds_write_b128 v5, {vr(O + 16 * i + 4 * k, 4)} offset:{L_R0 + (i - 1) * 4096 + k * 1024}")
        a("s_waitcnt vmcnt(0) lgkmcnt(0)")
        a("s_barrier")
        a(f"s_mul_i32 s47, {sSUB}, 12288")
        a("v_add_u32 v5, s47, v1")
        for i in range(3):
            for k in range(4):
                a(f"ds_read_b128 {vr(O + 16 * (i + 1) + 4 * k, 4)}, v5 offset:{L_R0 + i * 4096 + k * 1024}")
        for i in range(3):
            a(f"s_waitcnt lgkmcnt({8 - 4 * i})")
            for r in range(16):
                a(f"v_add_f32 v{O + r}, v{O + r}, v{O + 16 * (i + 1) + r}")
        a(f"v_mov_b32 v4, v{O + 12}")
        a(f"v_mov_b32 v5, v{O + 12}")
        a("v_permlane32_swap_b32 v4, v5")
        a("v_rcp_f32 v4, v5")
        for r in range(16):
            a(f"v_mul_f32 v{O + r}, v{O + r}, v4")
        for p in range(8):
            a(f"v_cvt_pk_bf16_f32 v{S[0] + p}, v{O + 2 * p}, v{O + 2 * p + 1}")
        a(f"v_cndmask_b32 v{S[0] + 6}, v{S[0] + 6}, 0, {sHI}")
        a(f"v_cndmask_b32 v{S[0] + 7}, v{S[0] + 7}, 0, {sHI}")
        a(f"s_lshl_b32 s47, {sM}, 2")
        a(f"s_add_u32 s47, s47, {sSUB}")
        a("s_lshl_b32 s47, s47, 4")
        a(f"s_add_u32 s47, s47, {sT}")
        a("s_lshl_b32 s47, s47, 11")
        a(f"s_add_u32 s47, s47, {WS_O}")
        a(f"buffer_store_dwordx4 {vr(S[0], 4)}, v1, {SWS}, s47 offen sc1")
        a(f"buffer_store_dwordx4 {vr(S[0] + 4, 4)}, v1, {SWS}, s47 offen offset:1024 sc1")

    def ldfr(self, regs, sbase, depth=None, cnt=None, stride=1024, va="v1"):
        a = self.a
        off = 0
        for i, r in enumerate(regs):
            if off + stride > 4096:
                a(f"s_add_u32 {sbase}, {sbase}, {off}")
                off = 0
            a(f"buffer_load_dwordx4 {vr(r, 4)}, {va}, {SWS}, {sbase} offen offset:{off} sc1")
            off += stride
            if depth is not None:
                cnt[0] += 1
                if cnt[0] > depth:
                    a(f"s_waitcnt vmcnt({depth})")
        return off

    def b_prefetch(self):
        a = self.a
        D = self.pf_depth
        cnt = [0]
        a(f"s_bfe_u32 s50, {sM}, 0x20001")
        a("s_mul_i32 s50, s50, 28")
        a("v_min_u32 v4, 59, v0")
        a("v_add_u32 v5, s50, v4")
        a(f"v_cndmask_b32 v4, v4, v5, {sHI}")
        a("v_lshlrev_b32 v4, 3, v4")
        self.poll_loop(1, sleep=4)
        self.ts(4)
        a(f"s_and_b32 s50, {sM}, 3")
        a("s_lshl_b32 s50, s50, 2")
        a(f"s_add_u32 s50, s50, {sSUB}")
        a("s_lshl_b32 s50, s50, 15")
        a(f"s_add_u32 s50, s50, {WS_WO}")
        self.ldfr([WOR(s) for s in range(32)], "s50", D, cnt)
        a(f"s_and_b32 s51, {sM}, 7")
        a("s_mul_i32 s51, s51, 7")
        a(f"s_add_u32 s58, s51, {sSUB}")
        a(f"s_mul_i32 s58, s58, {28 * 1024}")
        a(f"s_add_u32 s58, s58, {WS_W1}")
        a("s_mov_b32 s50, s58")
        self.ldfr([W1R(s) for s in range(22)], "s50", D, cnt)
        a(f"s_mul_i32 s50, s51, {28 * 1024}")
        a(f"s_mul_i32 s52, {sSUB}, {21 * 1024}")
        a("s_add_u32 s50, s50, s52")
        a(f"s_add_u32 s50, s50, {WS_W1 + 4 * 28 * 1024}")
        a(f"s_add_u32 s52, s52, {L_R1}")
        for i in range(21):
            if i % 4 == 0:
                if i:
                    a("s_add_u32 s50, s50, 4096")
                a(f"s_add_u32 m0, s52, {i * 1024}")
            a(f"buffer_load_dwordx4 v1, {SWS}, s50 offen offset:{(i % 4) * 1024} sc1 lds")
            a(f"s_waitcnt vmcnt({D})")
        a(f"s_lshl_b32 s50, {sT}, 7")
        a(f"s_lshr_b32 s52, {sM}, 2")
        a("s_lshl_b32 s52, s52, 5")
        a("s_add_u32 s50, s50, s52")
        a("s_mul_i32 s50, s50, 896")
        a(f"s_and_b32 s52, {sM}, 3")
        a("s_mul_i32 s52, s52, 224")
        a("s_add_u32 s50, s50, s52")
        a(f"s_lshl_b32 s52, {sSUB}, 6")
        a("s_add_u32 s50, s50, s52")
        a("v_mul_u32_u24 v4, 0x380, v2")
        a("v_lshl_add_u32 v4, v3, 3, v4")
        for q in range(4):
            a(f"buffer_load_dwordx2 {vr(16 + 2 * q, 2)}, v4, {SX}, s50 offen offset:{16 * q}")
        for h in range(2):
            a(f"s_mov_b32 s49, {144 + 56 * h}")
            self.poll(56, "s49", 1, sleep=4)
        if self.l2pf:
            a(f"s_lshr_b32 s50, {sWG}, 3")
            a("s_lshl_b32 s50, s50, 2")
            a(f"s_add_u32 s50, s50, {sSUB}")
            a(f"s_mul_i32 s52, s50, {7 * 1024}")
            a(f"s_add_u32 s52, s52, {WS_W2A}")
            a("v_min_u32 v4, 55, v0")
            a("v_lshlrev_b32 v4, 7, v4")
            a(f"buffer_load_dword v6, v4, {SWS}, s52 offen sc1")
            a(f"s_mul_i32 s52, s50, {7 * 768}")
            a(f"s_add_u32 s52, s52, {WS_W2B}")
            a("v_min_u32 v4, 41, v0")
            a("v_lshlrev_b32 v4, 7, v4")
            a(f"buffer_load_dword v7, v4, {SWS}, s52 offen sc1")
        a("s_waitcnt vmcnt(0)")

    def w2_loads(self, isB, f0, f1):
        a = self.a
        a(f"s_and_b32 s50, {sM}, 7")
        a("s_mul_i32 s50, s50, 112")
        a(f"s_mul_i32 s52, {sSUB}, 28")
        a("s_add_u32 s50, s50, s52")
        a(f"s_add_u32 s50, s50, {f0}")
        if isB:
            a("s_mul_i32 s50, s50, 768")
            a(f"s_add_u32 s50, s50, {WS_W2B}")
            a("v_mul_u32_u24 v5, 24, v3")
            a("v_min_u32 v4, 23, v2")
            a("v_add_lshl_u32 v5, v5, v4, 4")
            self.ldfr([W2R(f) for f in range(f0, f1)], "s50", stride=768, va="v5")
        else:
            a("s_lshl_b32 s50, s50, 10")
            a(f"s_add_u32 s50, s50, {WS_W2A}")
            self.ldfr([W2R(f) for f in range(f0, f1)], "s50")

    def colsum_w1(self, isB):
        a = self.a
        SEL, C = BUF, BUF + 4
        self.selector(SEL)
        if isB:
            for s in range(28):
                self.mfma16(C, SEL, W1R(s), "0" if s == 0 else None)
        else:
            a(f"s_mul_i32 s47, {sSUB}, {28 * 1024}")
            a(f"s_add_u32 s47, s47, {L_R1}")
            a("v_add_u32 v7, s47, v1")
            for g in range(7):
                for i in range(4):
                    a(f"ds_read_b128 {vr(112 + 16 * (g & 1) + 4 * i, 4)}, v7 offset:{(4 * g + i) * 1024}")
                if g:
                    a("s_waitcnt lgkmcnt(4)")
                    for i in range(4):
                        self.mfma16(C, SEL, 112 + 16 * ((g - 1) & 1) + 4 * i, "0" if (g == 1 and i == 0) else None)
            a("s_waitcnt lgkmcnt(0)")
            for i in range(4):
                self.mfma16(C, SEL, 112 + 4 * i)
        a(f"s_lshl_b32 s47, {sWV}, 7")
        a(f"s_add_u32 s47, s47, {L_CS2}")
        a("v_lshl_add_u32 v4, v0, 2, s47")
        a("v_lshl_add_u32 v5, v3, 4, s47")
        a("s_mov_b64 exec, 0xffff")
        a(f"ds_write_b32 v4, v{C}")
        a(f"ds_write_b32 v4, v{C + 1} offset:64")
        a("s_mov_b64 exec, -1")
        for q in range(4):
            a(f"ds_read_b128 {vr(CSR + 4 * q, 4)}, v5 offset:{32 * q}")
        a("s_waitcnt lgkmcnt(0)")

    def p3(self, isB):
        a = self.a
        a(f"s_lshl_b32 s50, {sT}, 2")
        a(f"s_lshr_b32 s51, {sM}, 2")
        a("s_add_u32 s59, s50, s51")
        a("s_lshl_b32 s50, s59, 15")
        a(f"s_lshl_b32 s51, {sWV}, 12")
        a("s_add_u32 s50, s50, s51")
        a(f"s_add_u32 s50, s50, {WS_O}")
        a(f"s_add_u32 m0, s51, {L_R0}")
        for i in range(4):
            a(f"buffer_load_dwordx4 v1, {SWS}, s50 offen offset:{1024 * i} sc1 lds")
        a("s_waitcnt vmcnt(0)")
        a("s_barrier")
        self.ts(7)
        if not isB:
            L = a.newlabel("Lp3a")
            a(f"s_cmp_lg_u32 {sWV}, {POLLW}")
            a(f"s_cbranch_scc1 {L}")
            self.w2_loads(False, 0, 28)
            a.label(L)
            return
        OB = [BUF, BUF + 4]
        a(f"ds_read_b128 {vr(OB[0], 4)}, v1 offset:{L_R0}")
        for s in range(32):
            if s < 31:
                a(f"ds_read_b128 {vr(OB[(s + 1) & 1], 4)}, v1 offset:{L_R0 + (s + 1) * 1024}")
                a("s_waitcnt lgkmcnt(1)")
            else:
                a("s_waitcnt lgkmcnt(0)")
            self.mfma(ACC, WOR(s), OB[s & 1], "0" if s == 0 else None)
            if s == 6:
                a(f"s_add_u32 s50, s58, {22 * 1024}")
                self.ldfr([W1R(x) for x in range(22, 28)], "s50")
        self.ts(8)
        for q in range(4):
            for i in range(2):
                a(f"v_lshlrev_b32 v4, 16, v{16 + 2 * q + i}")
                a(f"v_and_b32 v5, 0xffff0000, v{16 + 2 * q + i}")
                a(f"v_add_f32 v{ACC + 4 * q + 2 * i}, v{ACC + 4 * q + 2 * i}, v4")
                a(f"v_add_f32 v{ACC + 4 * q + 2 * i + 1}, v{ACC + 4 * q + 2 * i + 1}, v5")
        for p in range(8):
            a(f"v_cvt_pk_bf16_f32 v{BUF + p}, v{ACC + 2 * p}, v{ACC + 2 * p + 1}")
        a("s_mul_i32 s50, s59, 28")
        a(f"s_and_b32 s51, {sM}, 3")
        a("s_mul_i32 s52, s51, 7")
        a("s_add_u32 s50, s50, s52")
        a(f"s_lshl_b32 s52, {sSUB}, 1")
        a("s_add_u32 s50, s50, s52")
        a("s_lshl_b32 s50, s50, 10")
        a(f"s_add_u32 s50, s50, {WS_H1}")
        a(f"buffer_store_dwordx4 {vr(BUF, 4)}, v1, {SWS}, s50 offen sc1")
        a(f"v_mov_b32 v4, v{ACC}")
        a(f"v_mul_f32 v5, v{ACC}, v{ACC}")
        for r in range(1, 8):
            a(f"v_add_f32 v4, v4, v{ACC + r}")
            a(f"v_fmac_f32 v5, v{ACC + r}, v{ACC + r}")
        L = a.newlabel("Lp3h")
        a(f"s_cmp_eq_u32 {sSUB}, 3")
        a(f"s_cbranch_scc1 {L}")
        a(f"buffer_store_dwordx4 {vr(BUF + 4, 4)}, v1, {SWS}, s50 offen offset:1024 sc1")
        for r in range(8, 16):
            a(f"v_add_f32 v4, v4, v{ACC + r}")
            a(f"v_fmac_f32 v5, v{ACC + r}, v{ACC + r}")
        a.label(L)
        a("v_mov_b32 v6, v4")
        a("v_mov_b32 v7, v5")
        a("v_permlane32_swap_b32 v4, v6")
        a("v_permlane32_swap_b32 v5, v7")
        a("v_add_f32 v4, v4, v6")
        a("v_add_f32 v5, v5, v7")
        a("s_lshl_b32 s50, s59, 4")
        a("s_lshl_b32 s51, s51, 2")
        a("s_add_u32 s50, s50, s51")
        a(f"s_add_u32 s50, s50, {sSUB}")
        a("s_lshl_b32 s50, s50, 8")
        a(f"s_add_u32 s50, s50, {WS_ST}")
        a("v_lshlrev_b32 v6, 3, v0")
        a("s_mov_b64 exec, 0xffffffff")
        a(f"buffer_store_dwordx2 v[4:5], v6, {SWS}, s50 offen sc1")
        a("s_mov_b64 exec, -1")

    def p4(self, isB):
        a = self.a
        a(f"s_lshl_b32 s50, {sT}, 2")
        a(f"s_lshr_b32 s51, {sM}, 3")
        a("s_lshl_b32 s51, s51, 1")
        a("s_add_u32 s59, s50, s51")
        a(f"s_mul_i32 s50, s59, {28 * 1024}")
        a(f"s_mul_i32 s51, {sWV}, {7 * 1024}")
        a("s_add_u32 s50, s50, s51")
        a(f"s_add_u32 s50, s50, {WS_H1}")
        a(f"s_add_u32 m0, s51, {L_R0}")
        for i in range(7):
            if i == 4:
                a("s_add_u32 s50, s50, 4096")
                a(f"s_add_u32 m0, s51, {L_R0 + 4096}")
            a(f"buffer_load_dwordx4 v1, {SWS}, s50 offen offset:{1024 * (i % 4)} sc1 lds")
        Lst = a.newlabel("Lp4s")
        Lep = a.newlabel("Lp4e")
        Lres = a.newlabel("Lp4r")
        if not isB:
            a(f"s_cmp_eq_u32 {sWV}, {POLLW}")
            a(f"s_cbranch_scc1 {Lst}")
            a(f"s_mul_i32 s47, {sSUB}, {28 * 1024}")
            a(f"s_add_u32 s47, s47, {L_R1}")
            a("v_add_u32 v7, s47, v1")
        a("s_waitcnt vmcnt(0)")
        a("s_barrier")
        self.ts(10)
        HB = [[BUF, BUF + 4], [BUF + 8, BUF + 12]]
        WB = [112, 116]

        def reads(s):
            for rt in range(2):
                a(f"ds_read_b128 {vr(HB[s & 1][rt], 4)}, v1 offset:{L_R0 + (rt * 28 + s) * 1024}")
            if not isB:
                a(f"ds_read_b128 {vr(WB[s & 1], 4)}, v7 offset:{s * 1024}")
        nrd = 2 if isB else 3
        reads(0)
        for s in range(28):
            if s < 27:
                reads(s + 1)
                a(f"s_waitcnt lgkmcnt({nrd})")
            else:
                a("s_waitcnt lgkmcnt(0)")
            w = W1R(s) if isB else WB[s & 1]
            for rt in range(2):
                self.mfma(ACC + 16 * rt, w, HB[s & 1][rt], "0" if s == 0 else None)
            if s == 10 and isB:
                self.w2_loads(True, 18, 28)
        self.ts(11)
        a("s_barrier")
        a(f"v_lshlrev_b32 v4, 3, v2")
        a(f"v_add_u32 v4, {L_ST2}, v4")
        a("ds_read_b64 v[8:9], v4")
        a("ds_read_b64 v[10:11], v4 offset:256")
        a(f"s_and_b32 s51, {sM}, 7")
        a("s_mul_i32 s51, s51, 7")
        a(f"s_add_u32 s51, s51, {sSUB}")
        if not isB:
            a("s_add_u32 s51, s51, 4")
        a("s_lshl_b32 s51, s51, 1")
        a("s_mul_i32 s50, s59, 112")
        a("s_add_u32 s50, s50, s51")
        a("s_lshl_b32 s50, s50, 10")
        a(f"s_add_u32 s50, s50, {WS_H}")
        a(f"s_add_u32 s51, s50, {112 * 1024}")
        a("s_waitcnt lgkmcnt(0)")
        for rt in range(2):
            A0 = ACC + 16 * rt
            for r in range(16):
                a(f"v_mul_f32 v{A0 + r}, v{A0 + r}, v{8 + 2 * rt}")
                a(f"v_fmac_f32 v{A0 + r}, v{9 + 2 * rt}, v{CSR + r}")
            for p in range(8):
                a(f"v_cvt_pk_bf16_f32 v{A0 + p}, v{A0 + 2 * p}, v{A0 + 2 * p + 1}")
                a(f"v_pk_max_i16 v{A0 + p}, v{A0 + p}, 0")
            a(f"buffer_store_dwordx4 {vr(A0, 4)}, v1, {SWS}, s{50 + rt} offen sc1")
            a(f"buffer_store_dwordx4 {vr(A0 + 4, 4)}, v1, {SWS}, s{50 + rt} offen offset:1024 sc1")
        if not isB:
            a(f"s_branch {Lres}")
            a.label(Lst)
            a("s_lshl_b32 s50, s59, 12")
            a(f"s_add_u32 s50, s50, {WS_ST}")
            a("v_lshlrev_b32 v4, 3, v2")
            a("v_lshl_add_u32 v4, v3, 12, v4")
            for i in range(16):
                a(f"buffer_load_dwordx2 {vr(112 + 2 * i, 2)}, v4, {SWS}, s50 offen offset:{256 * i} sc1")
            a("s_waitcnt vmcnt(16)")
            a("s_barrier")
            a("s_waitcnt vmcnt(0)")
            for d in (16, 8, 4, 2):
                for i in range(d):
                    a(f"v_add_f32 v{112 + i}, v{112 + i}, v{112 + d + i}")
            self.stats(112, 113)
            a("v_mov_b32 v114, v112")
            a("v_lshlrev_b32 v4, 3, v0")
            a(f"v_add_u32 v4, {L_ST2}, v4")
            a("ds_write_b64 v4, v[113:114]" if False else "ds_write2_b32 v4, v113, v112 offset0:0 offset1:1")
            a("s_waitcnt lgkmcnt(0)")
            a("s_barrier")
            a.label(Lres)
        a(f"s_and_b32 s51, {sM}, 7")
        a("s_mul_i32 s51, s51, 7")
        a(f"s_lshl_b32 s52, {sSUB}, 1")
        a("s_add_u32 s51, s51, s52")
        for i in range(2):
            a(f"s_add_u32 s52, s51, {i}")
            a("s_min_u32 s52, s52, 55")
            a("s_lshr_b32 s53, s52, 1")
            a("s_lshl_b32 s53, s53, 10")
            a("s_and_b32 s52, s52, 1")
            a("s_lshl_b32 s52, s52, 3")
            a("s_add_u32 s53, s53, s52")
            a("v_add_u32 v4, s53, v1")
            a(f"ds_read_b64 {vr(CSR + 2 * i, 2)}, v4 offset:{L_R0 + (28 * 1024 if isB else 0)}")
        a("s_waitcnt lgkmcnt(0)")

    def p5(self, isB):
        a = self.a
        AH = self.p5_ahead
        a(f"s_add_u32 s50, s59, {1 if isB else 0}")
        a("s_mul_i32 s50, s50, 112")
        a(f"s_mul_i32 s51, {sSUB}, 28")
        a("s_add_u32 s50, s50, s51")
        a("s_lshl_b32 s50, s50, 10")
        a(f"s_add_u32 s50, s50, {WS_H}")
        a(f"s_lshl_b32 s51, {sSUB}, 13")
        a("v_add_u32 v6, s51, v1")
        a("v_add_u32 v7, 0x10000, v6")
        a("v_add_u32 v5, 0x20000, v6")
        if isB:
            a("s_add_u32 s51, s51, 4096")

        def dma(c):
            a(f"s_add_u32 m0, s51, {(c % 5) * 32768}")
            for i in range(4):
                a(f"buffer_load_dwordx4 v1, {SWS}, s50 offen offset:{1024 * i} sc1 lds")
            a("s_add_u32 s50, s50, 4096")
        issued = 0
        for c in range(AH):
            dma(c)
            issued += 1
        HB = [[BUF, BUF + 4], [BUF + 8, BUF + 12]]

        def reads(k):
            c, s = k >> 2, k & 3
            slot = c % 5
            va = ("v6", "v6", "v7", "v7", "v5")[slot]
            for rt in range(2):
                a(f"ds_read_b128 {vr(HB[k & 1][rt], 4)}, {va} offset:{(slot & 1) * 32768 * (slot < 4) + rt * 4096 + s * 1024}")

        def sync(c):
            nonlocal issued
            a(f"s_waitcnt vmcnt({(issued - c - 1) * 4})")
            a("s_barrier")
            if issued < 7 and issued <= c + 3:
                dma(issued)
                issued += 1
        sync(0)
        self.ts(13)
        reads(0)
        for k in range(28):
            if (k & 3) == 2 and k < 24:
                sync((k >> 2) + 1)
            if k < 27:
                reads(k + 1)
                a("s_waitcnt lgkmcnt(2)")
            else:
                a("s_waitcnt lgkmcnt(0)")
            for rt in range(2):
                self.mfma(ACC + 16 * rt, W2R(k), HB[k & 1][rt], "0" if k == 0 else None)
        self.ts(14)
        a("s_barrier")
        a(f"s_lshl_b32 s47, {sSUB}, 11")
        a("v_add_u32 v4, s47, v1")
        for rt in range(2):
            for q in range(3 if isB else 4):
                g = (4 if isB else 0) + q
                own = rt * 4 + (g >> 1)
                a(f"ds_write_b128 v4, {vr(ACC + 16 * rt + 4 * q, 4)} offset:{own * 8192 + (g & 1) * 1024}")
        a(f"s_lshl_b32 s47, {sWV}, 13")
        a("v_add_u32 v4, s47, v1")
        a("s_waitcnt lgkmcnt(0)")
        a("s_barrier")
        for i in range(8):
            a(f"ds_read_b128 {vr(ACC + 4 * i, 4)}, v4 offset:{1024 * i}")
        a(f"s_add_u32 s50, s59, {1 if isB else 0}")
        a(f"s_mul_i32 s50, s50, {32 * 896}")
        a(f"s_and_b32 s51, {sM}, 7")
        a("s_mul_i32 s51, s51, 112")
        a("s_add_u32 s50, s50, s51")
        a(f"s_lshl_b32 s51, {sSUB}, 5")
        a("s_add_u32 s50, s50, s51")
        a("v_mul_u32_u24 v6, 0x380, v2")
        a("v_lshl_add_u32 v6, v3, 4, v6")
        for i in range(4):
            a(f"v_lshlrev_b32 v{BUF + 2 * i}, 16, v{CSR + i}")
            a(f"v_and_b32 v{BUF + 2 * i + 1}, 0xffff0000, v{CSR + i}")
        for k in range(4):
            a(f"s_waitcnt lgkmcnt({6 - 2 * k})")
            for r in range(8):
                a(f"v_add_f32 v{BUF + r}, v{BUF + r}, v{ACC + 8 * k + r}")
        for p in range(4):
            a(f"v_cvt_pk_bf16_f32 v{ACC + p}, v{BUF + 2 * p}, v{BUF + 2 * p + 1}")
        a(f"v_permlane32_swap_b32 v{ACC}, v{ACC + 2}")
        a(f"v_permlane32_swap_b32 v{ACC + 1}, v{ACC + 3}")
        a(f"s_cmp_eq_u32 {sSUB}, 3")
        a("s_cselect_b32 exec_hi, 0, -1")
        a(f"buffer_store_dwordx4 {vr(ACC, 4)}, v6, {SOUT}, s50 offen")
        a("s_mov_b64 exec, -1")

    def idx_tm(self):
        self.a(f"s_lshl_b32 s49, {sT}, 4")
        self.a(f"s_add_u32 s49, s49, {sM}")

    def idx_half(self):
        self.a(f"s_lshl_b32 s49, {sT}, 4")
        self.a(f"s_and_b32 s47, {sM}, 8")
        self.a("s_add_u32 s49, s49, s47")

    def path(self, isB):
        a = self.a
        if isB:
            self.nonce_write()
        self.p1(isB)
        self.ts(2)

        def my1():
            a(f"s_lshl_b32 s49, {sH1}, 4")
            a(f"s_add_u32 s49, s49, {sR1}")

        def my2():
            a(f"s_lshl_b32 s49, {sM}, 4")
            a(f"s_add_u32 s49, s49, {sT}")

        def pT():
            a(f"s_lshl_b32 s49, {sT}, 4")
        self.handoff(1, isB, my1, 16, pT)
        self.ts(3)
        if self.stop <= 1:
            return
        if isB:
            self.b_prefetch()
            self.ts(5)
            a("s_barrier")
        else:
            self.p2()
            self.ts(5)

        def btw2():
            if not isB:
                self.w2_loads(False, 0, 28)
                self.colsum_w1(False)
        self.handoff(2, isB, my2, 16 if self.stop > 2 else 0, pT, btw2 if self.stop > 2 else None)
        self.ts(6)
        if self.stop <= 2:
            return
        self.p3(isB)

        def btw3():
            if isB:
                self.w2_loads(True, 0, 18)
                self.colsum_w1(True)
        self.handoff(3, isB, self.idx_tm, 8 if self.stop > 3 else 0, self.idx_half, btw3 if self.stop > 3 else None)
        self.ts(9)
        if self.stop <= 3:
            return
        self.p4(isB)
        self.handoff(4, isB, self.idx_tm, 8 if self.stop > 4 else 0, self.idx_half)
        self.ts(12)
        if self.stop <= 4:
            return
        self.p5(isB)
        self.ts(15)

    def build(self):
        a = self.a
        self.prologue()
        self.ts(0)
        a(f"s_cmp_ge_u32 {sWV}, 4")
        a("s_cbranch_scc1 LB")
        self.path(False)
        a("s_branch Lfin")
        a.label("LB")
        self.path(True)
        a.label("Lfin")
        self.ts_flush()
        a.label("Lend")
        a("s_endpgm")
        return self.wrap(a.finalize())

    def wrap(self, body):
        hdr = open(f"cdna_kernels/{NAME}.s.ref").read().split("; Override")[0]
        return (hdr +
                f"; @launch grid=(256,1,1) block=(512,1,1) lds={LDS_SIZE}\n"
                '.amdgcn_target "amdgcn-amd-amdhsa--gfx950"\n.text\n'
                f".globl {KN}\n.p2align 8\n.type {KN},@function\n{KN}:\n" + body +
                '.section .rodata,"a"\n.p2align 6\n'
                f".amdhsa_kernel {KN}\n"
                "  .amdhsa_next_free_vgpr 256\n  .amdhsa_next_free_sgpr 102\n  .amdhsa_accum_offset 256\n"
                "  .amdhsa_group_segment_fixed_size 0\n  .amdhsa_kernarg_size 72\n  .amdhsa_user_sgpr_count 2\n"
                "  .amdhsa_user_sgpr_kernarg_segment_ptr 1\n  .amdhsa_system_sgpr_workgroup_id_x 1\n"
                ".end_amdhsa_kernel\n")


if __name__ == "__main__":
    import argparse
    ap = argparse.ArgumentParser()
    ap.add_argument("-o", default="k.s")
    ap.add_argument("--stop", type=int, default=99)
    ap.add_argument("--stamp", action="store_true")
    ap.add_argument("-D", action="append", default=[])
    args = ap.parse_args()
    kw = {}
    for d in args.D:
        k, v = d.split("=")
        kw[k] = int(v)
    g = Gen(stop=args.stop, stamp=args.stamp, **kw)
    open(args.o, "w").write(g.build())
    print("written", args.o, "pads", g.a.npad)
```
